```python
import torch

def _softmax(x, axis=-1):
    return torch.softmax(x, dim=axis)
def _gelu(x):
    return torch.nn.functional.gelu(x, approximate="tanh")
def _silu(x):
    return torch.nn.functional.silu(x)
def _sigmoid(x):
    return torch.sigmoid(x)
def _layernorm(x, axis=-1, eps=1e-5):
    m = x.mean(dim=axis, keepdim=True)
    v = x.var(dim=axis, keepdim=True, unbiased=False)
    return (x - m) / torch.sqrt(v + eps)
def _scatter_add(tgt, idx, src, axis=0):
    return tgt.clone().index_add_(axis, idx, src)
def _segment_sum(src, seg, n):
    out = torch.zeros((n,) + src.shape[1:], dtype=src.dtype)
    return out.index_add_(0, seg, src)
def _pad(x, pw):
    flat = tuple(v for pair in reversed(pw) for v in pair)
    return torch.nn.functional.pad(x, flat)

kernel_name = 'standalone__gqa_block_cached__near_ridge'

def setup_inputs():

    _w = (lambda a: (lambda t: t.to(torch.bfloat16) if t.is_floating_point() else t)(torch.as_tensor(a)))
    B, Sq, D = 8, 112, 576
    Hq, Hkv, Sk, Dh = 32, 16, 512, 128
    assert Hq % Hkv == 0, (Hq, Hkv)
    return {
        "x": _w((lambda *s: torch.randn(*s, dtype=torch.bfloat16) * 0.8)(B, Sq, D)),
        "k_cache": _w((lambda *s: torch.randn(*s, dtype=torch.bfloat16) * 0.8)(B, Hkv, Sk, Dh)),
        "v_cache": _w((lambda *s: torch.randn(*s, dtype=torch.bfloat16) * 0.05)(B, Hkv, Sk, Dh)),
        "wq": _w((lambda *s: torch.randn(*s, dtype=torch.bfloat16) * 0.8)(D, Hq * Dh) * (D ** -0.5)),
        "wo": _w((lambda *s: torch.randn(*s, dtype=torch.bfloat16) * 0.05)(Hq * Dh, D) * ((Hq * Dh) ** -0.5)),
    }

def reference(x, k_cache, v_cache, wq, wo):
    B, Sq, D = x.shape
    Hq, Dh = 32, 128
    Hkv = k_cache.shape[1]
    rep = Hq // Hkv
    q = (lambda x, *d: x.permute(*d))((x @ wq).reshape(B, Sq, Hq, Dh), 0, 2, 1, 3)
    k = (lambda x, n, axis: torch.repeat_interleave(x, n, dim=axis))(k_cache, rep, axis=1)
    v = (lambda x, n, axis: torch.repeat_interleave(x, n, dim=axis))(v_cache, rep, axis=1)
    scores = torch.einsum("bhqd,bhkd->bhqk", q, k) * (Dh ** -0.5)
    p = _softmax(scores, axis=-1)
    o = torch.einsum("bhqk,bhkd->bhqd", p, v)
    return (lambda x, *d: x.permute(*d))(o, 0, 2, 1, 3).reshape(B, Sq, Hq * Dh) @ wo
```

```python
import re

def regs(spec):
    if spec is None:
        return []
    if isinstance(spec, (list, tuple, set)):
        out = []
        for s in spec:
            out += regs(s)
        return out
    m = re.fullmatch(r'([vas])\[(\d+):(\d+)\]', spec)
    if m:
        return [f"{m.group(1)}{i}" for i in range(int(m.group(2)), int(m.group(3)) + 1)]
    return [spec]

def vr(base, n=1, p='v'):
    if n == 1:
        return f"{p}{base}"
    return f"{p}[{base}:{base+n-1}]"

class Asm:
    def __init__(self):
        self.lines = []
        self.ws = 0
        self.lastw = {}
        self.srcc = {}
        self.lgkm = []
        self.vm = []
        self.n_by_kind = {}
        self.nops = 0

    def raw(self, text):
        self.lines.append(text)

    def comment(self, text):
        self.lines.append(f"    ; {text}")

    def label(self, name):
        self.lines.append(f"{name}:")

    def _nop(self, n):
        while n > 0:
            k = min(n, 16)
            self.lines.append(f"    s_nop {k-1}")
            self.ws += k
            self.nops += k
            n -= k

    def nop(self, n):
        self._nop(n)

    def wait_lgkm(self, n):
        if len(self.lgkm) > n:
            self.lines.append(f"    s_waitcnt lgkmcnt({n})")
            self.ws += 1
            self.lgkm = self.lgkm[len(self.lgkm) - n:] if n > 0 else []

    def wait_vm(self, n):
        if len(self.vm) > n:
            assert n <= 63
            self.lines.append(f"    s_waitcnt vmcnt({n})")
            self.ws += 1
            self.vm = self.vm[len(self.vm) - n:] if n > 0 else []

    def wait_vm_tag(self, tag):
        last = -1
        for i, (t, d) in enumerate(self.vm):
            if t == tag:
                last = i
        if last >= 0:
            self.wait_vm(len(self.vm) - 1 - last)

    def _check_pending(self, touched):
        t = set(touched)
        last = -1
        for i, d in enumerate(self.lgkm):
            if d & t:
                last = i
        if last >= 0:
            self.wait_lgkm(len(self.lgkm) - 1 - last)
        last = -1
        for i, (tag, d) in enumerate(self.vm):
            if d & t:
                last = i
        if last >= 0:
            self.wait_vm(len(self.vm) - 1 - last)

    def _need(self, kind, reads, writes, srcc, exact_c):
        need = 0
        def dist(ws):
            return self.ws - ws
        def req(prod_ws, n):
            nonlocal need
            gap = self.ws - prod_ws - 1
            if n - gap > need:
                need = n - gap
        isvalu = kind in ('valu', 'trans', 'permlane', 'dpp', 'readlane')
        ismfma = kind in ('mfma8', 'mfma4')
        ismem = kind in ('ds_read', 'ds_write', 'vm_load', 'vm_store', 'vm_lds')
        for r in reads:
            if r not in self.lastw:
                continue
            k, p = self.lastw[r]
            if k in ('valu', 'trans', 'permlane', 'dpp', 'readlane'):
                if ismfma and r[0] in 'va':
                    req(p, 2)
                if kind == 'permlane':
                    req(p, 2)
                if kind == 'dpp':
                    req(p, 2)
                if kind == 'readlane':
                    req(p, 1)
                if k == 'trans' and isvalu and kind != 'trans':
                    req(p, 1)
                if k == 'trans' and kind == 'trans':
                    req(p, 1)
                if r[0] == 's' or r in ('vcc', 'exec'):
                    if isvalu:
                        req(p, 2)
                    if ismem:
                        req(p, 5)
                    if kind == 'salu':
                        req(p, 4)
            if k in ('mfma8', 'mfma4'):
                n = 8 if k == 'mfma8' else 4
                if ismfma:
                    if r in srcc and not (r in reads_ab_cache):
                        if exact_c and k == kind:
                            pass
                        else:
                            req(p, n + 2)
                    else:
                        req(p, n + 4)
                else:
                    req(p, n + 4)
            if k == 'salu' and r == 'm0' and kind == 'vm_lds':
                req(p, 1)
        for r in writes:
            if r in self.lastw:
                k, p = self.lastw[r]
                if k in ('mfma8', 'mfma4') and not ismfma:
                    n = 8 if k == 'mfma8' else 4
                    req(p, n + 4)
                if k in ('mfma8', 'mfma4') and ismfma and r not in srcc:
                    n = 8 if k == 'mfma8' else 4
                    req(p, n + 2)
                if k == 'vm_store_data' and isvalu:
                    req(p, 2)
            if r in self.srcc and isvalu:
                p, n = self.srcc[r]
                req(p, n)
        return need

    def emit(self, text, kind, reads=(), writes=(), srcc=(), tag=None):
        global reads_ab_cache
        reads = regs(list(reads))
        writes = regs(list(writes))
        srcc = regs(list(srcc))
        reads_ab_cache = set(reads)
        allreads = reads + srcc
        self._check_pending(allreads + writes)
        exact_c = False
        if srcc:
            exact_c = (srcc == writes)
        need = self._need(kind, allreads, writes, set(srcc), exact_c)
        if need > 0:
            self._nop(need)
        self.lines.append("    " + text)
        me = self.ws
        self.ws += 1
        self.n_by_kind[kind] = self.n_by_kind.get(kind, 0) + 1
        if kind == 'ds_read':
            self.lgkm.append(set(writes))
            assert len(self.lgkm) <= 15, "too many lgkm outstanding"
        elif kind == 'ds_write':
            self.lgkm.append(set())
            assert len(self.lgkm) <= 15
        elif kind in ('vm_load', 'vm_lds', 'vm_store'):
            self.vm.append((tag, set(writes)))
            assert len(self.vm) <= 63, "too many vm outstanding"
        if kind == 'vm_store':
            for r in reads:
                if r[0] in 'va':
                    self.lastw[r] = ('vm_store_data', me)
        for r in writes:
            self.lastw[r] = (kind, me)
        if kind in ('mfma8', 'mfma4'):
            for r in srcc:
                self.srcc[r] = (me, 7 if kind == 'mfma8' else 3)

    def salu(self, text, reads=(), writes=()):
        self.emit(text, 'salu', reads, writes)

    def valu(self, text, reads=(), writes=()):
        self.emit(text, 'valu', reads, writes)

    def trans(self, text, reads=(), writes=()):
        self.emit(text, 'trans', reads, writes)

    def mfma32(self, d, a, b, c=None):
        if c is None:
            self.emit(f"v_mfma_f32_32x32x16_bf16 {d}, {a}, {b}, {d}", 'mfma8', [a, b], [d], [d])
        elif c == 0:
            self.emit(f"v_mfma_f32_32x32x16_bf16 {d}, {a}, {b}, 0", 'mfma8', [a, b], [d])
        else:
            self.emit(f"v_mfma_f32_32x32x16_bf16 {d}, {a}, {b}, {c}", 'mfma8', [a, b], [d], [c])

    def barrier(self):
        self.lines.append("    s_barrier")
        self.ws += 1

    def text(self):
        return "\n".join(self.lines) + "\n"
```

```python
from asmlib import Asm, vr
import struct

def f32bits(x):
    return struct.unpack('<I', struct.pack('<f', x))[0]

C_SCALE = (128 ** -0.5) * 1.4426950408889634
THR = 8.0 / C_SCALE

O0 = 0
QF = 64
SA = 96
POOL = 160
VK = 192
VV = 200
VKD = 204
VVD = 208
VWD = 209
VX = 210
VOST = 211
MRUN = 212
MC = 213
THRV = 214
L0 = 215
L1 = 216
TMAX = 217
TMAX2 = 218
T0 = 219
VWR = SA
NPOOL = 8
D_AHEAD = 5

S_X, S_K, S_V, S_W, S_O = 20, 24, 28, 32, 36
S_H256, S_KVB, S_W4096, S_TMP, S_C = 47, 48, 49, 50, 51

def gen_k1(a: Asm, name, dbg=None):
    a.label(name)
    a.raw("    s_cmp_ge_u32 s2, 256")
    a.raw(f"    s_cbranch_scc1 {name}_done")
    a.raw("    s_load_dwordx8 s[4:11], s[0:1], 0")
    a.raw("    s_load_dwordx4 s[12:15], s[0:1], 32")
    a.raw("    s_load_dwordx4 s[16:19], s[0:1], 48")
    S = a.salu
    V = a.valu
    S("s_and_b32 s40, s2, 7", [], ['s40'])
    S("s_lshr_b32 s41, s2, 3", [], ['s41'])
    S("s_lshr_b32 s42, s41, 2", ['s41'], ['s42'])
    S("s_and_b32 s43, s41, 3", ['s41'], ['s43'])
    S("s_lshl_b32 s44, s40, 2", ['s40'], ['s44'])
    S("s_add_u32 s44, s44, s43", ['s44', 's43'], ['s44'])
    S("s_lshr_b32 s45, s44, 1", ['s44'], ['s45'])
    t = T0
    V(f"v_lshrrev_b32 v{t}, 6, v0", ['v0'], [f'v{t}'])
    V(f"v_and_b32 v{t+1}, 63, v0", ['v0'], [f'v{t+1}'])
    a.emit(f"v_readfirstlane_b32 s46, v{t}", 'readlane', [f'v{t}'], ['s46'])
    L = f"v{t+1}"
    q, hi, sub, i16, r, c, l4 = [f"v{t+2+i}" for i in range(7)]
    V(f"v_and_b32 {q}, 31, {L}", [L], [q])
    V(f"v_lshrrev_b32 {hi}, 5, {L}", [L], [hi])
    V(f"v_bfe_u32 {sub}, {L}, 4, 1", [L], [sub])
    V(f"v_and_b32 {i16}, 15, {L}", [L], [i16])
    V(f"v_bfe_u32 {r}, {L}, 2, 2", [L], [r])
    V(f"v_and_b32 {c}, 3, {L}", [L], [c])
    V(f"v_lshrrev_b32 {l4}, 4, {L}", [L], [l4])
    S(f"s_lshl_b32 s{S_H256}, s44, 8", ['s44'], [f's{S_H256}'])
    S("s_lshl_b32 s52, s42, 4", ['s42'], ['s52'])
    S("s_add_u32 s52, s52, s45", ['s52', 's45'], ['s52'])
    S(f"s_lshl_b32 s{S_KVB}, s52, 17", ['s52'], [f's{S_KVB}'])
    S(f"s_lshl_b32 s{S_W4096}, s46, 12", ['s46'], [f's{S_W4096}'])
    S(f"s_mov_b32 s{S_C}, 0x{f32bits(C_SCALE):08x}", [], [f's{S_C}'])
    x0, x1, x2, x3 = [f"v{SA+20+i}" for i in range(4)]
    S("s_lshl_b32 s53, s46, 5", ['s46'], ['s53'])
    V(f"v_add_u32 {x0}, s53, {q}", ['s53', q], [x0])
    S("s_mul_i32 s54, s42, 112", ['s42'], ['s54'])
    V(f"v_add_u32 {x1}, s54, {x0}", ['s54', x0], [x1])
    S("s_movk_i32 s55, 1152", [], ['s55'])
    V(f"v_mul_lo_u32 {x1}, {x1}, s55", [x1, 's55'], [x1])
    V(f"v_lshl_add_u32 v{VX}, {hi}, 4, {x1}", [hi, x1], [f'v{VX}'])
    V(f"v_lshrrev_b32 {x1}, 4, {x0}", [x0], [x1])
    S("s_mul_i32 s54, s42, 7", ['s42'], ['s54'])
    V(f"v_add_u32 {x1}, s54, {x1}", ['s54', x1], [x1])
    V(f"v_lshlrev_b32 {x1}, 7, {x1}", [x1], [x1])
    S("s_lshl_b32 s54, s44, 2", ['s44'], ['s54'])
    V(f"v_add_u32 {x1}, s54, {x1}", ['s54', x1], [x1])
    V(f"v_lshlrev_b32 {x1}, 2, {x1}", [x1], [x1])
    V(f"v_add_u32 {x1}, {x1}, {hi}", [x1, hi], [x1])
    V(f"v_lshlrev_b32 {x1}, 8, {x1}", [x1], [x1])
    V(f"v_lshl_add_u32 {x1}, {i16}, 4, {x1}", [i16, x1], [x1])
    V(f"v_mov_b32 {x2}, 0x40000000", [], [x2])
    V(f"v_cmp_gt_u32 vcc, 112, {x0}", [x0], ['vcc'])
    V(f"v_cndmask_b32 v{VOST}, {x2}, {x1}, vcc", [x2, x1, 'vcc'], [f'v{VOST}'])
    S("s_lshl_b32 s53, s46, 4", ['s46'], ['s53'])
    V(f"v_add_u32 {x0}, s53, {l4}", ['s53', l4], [x0])
    V(f"v_lshlrev_b32 {x1}, 2, {l4}", [l4], [x1])
    V(f"v_xor_b32 {x1}, {x1}, {i16}", [x1, i16], [x1])
    V(f"v_lshlrev_b32 {x1}, 4, {x1}", [x1], [x1])
    V(f"v_lshl_add_u32 v{VWD}, {x0}, 13, {x1}", [x0, x1], [f'v{VWD}'])
    V(f"v_lshl_add_u32 v{VVD}, {x0}, 8, {x1}", [x0, x1], [f'v{VVD}'])
    for j in range(4):
        V(f"v_add_u32 {x1}, {4*j}, {l4}", [l4], [x1])
        V(f"v_xor_b32 {x1}, {x1}, {i16}", [x1, i16], [x1])
        V(f"v_lshlrev_b32 {x1}, 4, {x1}", [x1], [x1])
        V(f"v_lshl_add_u32 v{VKD+j}, {x0}, 8, {x1}", [x0, x1], [f'v{VKD+j}'])
    V(f"v_and_b32 {x0}, 15, {q}", [q], [x0])
    V(f"v_xor_b32 {x0}, {x0}, {hi}", [x0, hi], [x0])
    V(f"v_lshlrev_b32 {x0}, 4, {x0}", [x0], [x0])
    V(f"v_lshl_add_u32 {x0}, {q}, 8, {x0}", [q, x0], [x0])
    for s in range(8):
        V(f"v_xor_b32 v{VK+s}, {32*s}, {x0}", [x0], [f'v{VK+s}'])
    V(f"v_lshl_add_u32 {x0}, {hi}, 2, {r}", [hi, r], [x0])
    V(f"v_lshlrev_b32 {x0}, 8, {x0}", [x0], [x0])
    V(f"v_lshl_add_u32 {x0}, {sub}, 5, {x0}", [sub, x0], [x0])
    V(f"v_lshl_add_u32 {x0}, {c}, 3, {x0}", [c, x0], [x0])
    V(f"v_add_u32 {x0}, 0x10000, {x0}", [x0], [x0])
    for T in range(4):
        V(f"v_xor_b32 {x1}, {T}, {r}", [r], [x1])
        V(f"v_lshl_add_u32 v{VV+T}, {x1}, 6, {x0}", [x1, x0], [f'v{VV+T}'])
    V(f"v_lshl_add_u32 {x0}, {hi}, 3, {r}", [hi, r], [x0])
    V(f"v_lshlrev_b32 {x0}, 8, {x0}", [x0], [x0])
    V(f"v_lshl_add_u32 {x0}, {sub}, 5, {x0}", [sub, x0], [x0])
    V(f"v_and_b32 {x1}, 1, {c}", [c], [x1])
    V(f"v_lshl_add_u32 {x0}, {x1}, 4, {x0}", [x1, x0], [x0])
    V(f"v_lshrrev_b32 {x1}, 1, {c}", [c], [x1])
    V(f"v_lshl_add_u32 {x0}, {x1}, 3, {x0}", [x1, x0], [x0])
    for T in range(4):
        V(f"v_xor_b32 {x1}, {T}, {r}", [r], [x1])
        V(f"v_lshl_add_u32 v{VWR+T}, {x1}, 6, {x0}", [x1, x0], [f'v{VWR+T}'])
        V(f"v_add_u32 v{VWR+4+T}, 0x10000, v{VWR+T}", [f'v{VWR+T}'], [f'v{VWR+4+T}'])
        V(f"v_add_u32 v{VWR+8+T}, 0x20000, v{VWR+T}", [f'v{VWR+T}'], [f'v{VWR+8+T}'])
    a.raw("    s_waitcnt lgkmcnt(0)")
    a.ws += 1
    def srd(base, ptr, size):
        S(f"s_mov_b32 s{base}, s{ptr}", [], [f's{base}'])
        S(f"s_and_b32 s{base+1}, s{ptr+1}, 0xffff", [], [f's{base+1}'])
        S(f"s_mov_b32 s{base+2}, {size}", [], [f's{base+2}'])
        S(f"s_mov_b32 s{base+3}, 0x00020000", [], [f's{base+3}'])
    srd(S_X, 4, 896 * 1152)
    srd(S_K, 6, 8 * 16 * 512 * 256)
    srd(S_V, 8, 8 * 16 * 512 * 256)
    srd(S_W, 10, 576 * 8192)
    srd(S_O, 18, 56 * 128 * 1024)

    tiles = {}
    free = list(range(10))
    pending = ['W0', 'W1', 'K0', 'W2', 'K1', 'W3', 'K2', 'W4', 'K3', 'W5', 'W6', 'W7', 'W8',
               'V0', 'V1', 'V2', 'V3', 'K4', 'V4', 'K5', 'V5', 'K6', 'V6', 'K7', 'V7']
    xloaded = set()

    def load_x(i):
        if i in xloaded or i > 8:
            return
        xloaded.add(i)
        for ks in range(4 * i, 4 * i + 4):
            a.emit(f"buffer_load_dwordx4 a[{4*ks}:{4*ks+3}], v{VX}, s[{S_X}:{S_X+3}], 0 offen offset:{ks*32}",
                   'vm_load', [f'v{VX}'], [f'a[{4*ks}:{4*ks+3}]'], tag=f'X{i}')

    def issue_tile(nm, slot):
        tiles[nm] = slot
        k, t = nm[0], int(nm[1:])
        if k == 'W':
            for j in range(4):
                S(f"s_add_u32 s{S_TMP}, s{S_H256}, 0x{t*524288 + j*32768:x}", [f's{S_H256}'], [f's{S_TMP}'])
                S(f"s_add_u32 m0, s{S_W4096}, 0x{slot*16384 + j*1024:x}", [f's{S_W4096}'], ['m0'])
                a.emit(f"buffer_load_dwordx4 v{VWD}, s[{S_W}:{S_W+3}], s{S_TMP} offen lds",
                       'vm_lds', [f'v{VWD}', 'm0', f's{S_TMP}'], [], tag=nm)
        else:
            S(f"s_add_u32 s{S_TMP}, s{S_KVB}, 0x{t*16384:x}", [f's{S_KVB}'], [f's{S_TMP}'])
            S(f"s_add_u32 m0, s{S_W4096}, 0x{slot*16384:x}", [f's{S_W4096}'], ['m0'])
            for j in range(4):
                vo = (VKD + j) if k == 'K' else VVD
                sr = S_K if k == 'K' else S_V
                off = f" offset:{j*1024}" if j else ""
                a.emit(f"buffer_load_dwordx4 v{vo}, s[{sr}:{sr+3}], s{S_TMP} offen{off} lds",
                       'vm_lds', [f'v{vo}', 'm0', f's{S_TMP}'], [], tag=nm)

    def issue_pending():
        nonlocal pending
        rest = []
        for nm in pending:
            k = nm[0]
            pref = {'K': [0, 1, 2, 3], 'V': [4, 5, 6, 7], 'W': [8, 9, 4, 5, 6, 7]}[k]
            sl = next((s for s in pref if s in free), None)
            if sl is None or len(a.vm) + 8 > 63:
                rest.append(nm)
                continue
            free.remove(sl)
            if k == 'W':
                load_x(int(nm[1:]))
            issue_tile(nm, sl)
        pending = rest

    issue_pending()

    M = []
    def pool(i):
        return POOL + 4 * (i % NPOOL)

    def w_frag_reads(tn, i, T):
        def f(p):
            slot = tiles[tn]
            win, so = slot // 4, (slot % 4) * 16384
            for half in range(2):
                off = so + (i * 16 + half * 4) * 256
                a.emit(f"ds_read_b64_tr_b16 v[{p+2*half}:{p+2*half+1}], v{VWR+4*win+T} offset:{off}",
                       'ds_read', [f'v{VWR+4*win+T}'], [f'v[{p+2*half}:{p+2*half+1}]'])
        return f

    def k_frag_reads(tn, kt, s):
        def f(p):
            slot = tiles[tn]
            assert slot < 4
            off = slot * 16384 + kt * 8192
            a.emit(f"ds_read_b128 v[{p}:{p+3}], v{VK+s} offset:{off}", 'ds_read', [f'v{VK+s}'], [f'v[{p}:{p+3}]'])
        return f

    def v_frag_reads(tn, ks, T):
        def f(p):
            slot = tiles[tn]
            assert 4 <= slot < 8
            for half in range(2):
                off = (slot - 4) * 16384 + (ks * 16 + half * 8) * 256
                a.emit(f"ds_read_b64_tr_b16 v[{p+2*half}:{p+2*half+1}], v{VV+T} offset:{off}",
                       'ds_read', [f'v{VV+T}'], [f'v[{p+2*half}:{p+2*half+1}]'])
        return f

    for t in range(9):
        order = [(i, T) for i in range(4) for T in range(4)] if t < 8 else [(i, T) for T in range(4) for i in range(4)]
        for (i, T) in order:
            ks = 4 * t + i
            first = (t == 0 and i == 0)
            def mf(p, ks=ks, T=T, first=first):
                a.mfma32(vr(O0 + 16 * T, 16), vr(p, 4), f"a[{4*ks}:{4*ks+3}]", 0 if first else None)
            M.append(dict(tiles=[f'W{t}'], reads=w_frag_reads(f'W{t}', i, T), mfma=mf, phase=t, kind='Q', T=T, i=i))
    def add_S(t, phase, tl):
        sb = SA + 32 * (t & 1)
        for kt in range(2):
            for s in range(8):
                def mf(p, kt=kt, s=s, sb=sb):
                    a.mfma32(vr(sb + 16 * kt, 16), vr(p, 4), vr(QF + 4 * s, 4), 0 if s == 0 else None)
                M.append(dict(tiles=tl, reads=k_frag_reads(f'K{t}', kt, s), mfma=mf, phase=phase, kind='S', t=t, kt=kt, s=s))
    def add_PV(t, phase, tl):
        sb = SA + 32 * (t & 1)
        for ks in range(4):
            for T in range(4):
                def mf(p, ks=ks, T=T, sb=sb, t=t):
                    a.mfma32(vr(O0 + 16 * T, 16), vr(p, 4), vr(sb + 8 * ks, 4), 0 if (t == 0 and ks == 0) else None)
                M.append(dict(tiles=tl, reads=v_frag_reads(f'V{t}', ks, T), mfma=mf, phase=phase, kind='PV', t=t, ks=ks, T=T))
    add_S(0, 9, ['K0'])
    for t in range(7):
        add_S(t + 1, 10 + t, [f'K{t+1}', f'V{t}'])
        add_PV(t, 10 + t, [f'K{t+1}', f'V{t}'])
    add_PV(7, 17, ['V7'])

    fill = {}
    def addfill(idx, fn):
        fill.setdefault(idx, []).append(fn)

    def idx_of(pred):
        return [i for i, m in enumerate(M) if pred(m)]

    qlast = idx_of(lambda m: m['kind'] == 'Q' and m['phase'] == 8)
    base = qlast[0]
    for T in range(4):
        at = base + 4 * (T + 1) + 2
        for u in range(8):
            def f(T=T, u=u):
                d = QF + 8 * T + u
                s0 = O0 + 16 * T + 2 * u
                V(f"v_cvt_pk_bf16_f32 v{d}, v{s0}, v{s0+1}", [f'v{s0}', f'v{s0+1}'], [f'v{d}'])
            addfill(at + (u // 4), f)

    def max_tree(sb, kt_list, dst_first):
        ops = []
        for kt in kt_list:
            rr = [sb + 16 * kt + k for k in range(16)]
            acc = TMAX if kt == 0 else TMAX2
            ops.append(lambda acc=acc, rr=rr: V(f"v_max3_f32 v{acc}, v{rr[0]}, v{rr[1]}, v{rr[2]}", [f'v{x}' for x in rr[:3]], [f'v{acc}']))
            for k in range(3, 15, 2):
                ops.append(lambda acc=acc, k=k, rr=rr: V(f"v_max3_f32 v{acc}, v{acc}, v{rr[k]}, v{rr[k+1]}", [f'v{acc}', f'v{rr[k]}', f'v{rr[k+1]}'], [f'v{acc}']))
            ops.append(lambda acc=acc, rr=rr: V(f"v_max_f32 v{acc}, v{acc}, v{rr[15]}", [f'v{acc}', f'v{rr[15]}'], [f'v{acc}']))
        return ops

    def max_finish():
        return [
            lambda: V(f"v_max_f32 v{TMAX}, v{TMAX}, v{TMAX2}", [f'v{TMAX}', f'v{TMAX2}'], [f'v{TMAX}']),
            lambda: V(f"v_mov_b32 v{TMAX2}, v{TMAX}", [f'v{TMAX}'], [f'v{TMAX2}']),
            lambda: a.emit(f"v_permlane32_swap_b32 v{TMAX}, v{TMAX2}", 'permlane', [f'v{TMAX}', f'v{TMAX2}'], [f'v{TMAX}', f'v{TMAX2}']),
            lambda: V(f"v_max_f32 v{TMAX}, v{TMAX}, v{TMAX2}", [f'v{TMAX}', f'v{TMAX2}'], [f'v{TMAX}']),
        ]

    rare = []
    def decision(t):
        def f():
            if t == 0:
                V(f"v_mov_b32 v{MRUN}, v{TMAX}", [f'v{TMAX}'], [f'v{MRUN}'])
                V(f"v_mul_f32 v{MC}, s{S_C}, v{TMAX}", [f'v{TMAX}', f's{S_C}'], [f'v{MC}'])
                V(f"v_add_f32 v{THRV}, 0x{f32bits(THR):08x}, v{TMAX}", [f'v{TMAX}'], [f'v{THRV}'])
                V(f"v_mov_b32 v{L0}, 0", [], [f'v{L0}'])
                V(f"v_mov_b32 v{L1}, 0", [], [f'v{L1}'])
            else:
                V(f"v_cmp_gt_f32 vcc, v{TMAX}, v{THRV}", [f'v{TMAX}', f'v{THRV}'], ['vcc'])
                a.raw(f"    s_cbranch_vccnz {name}_rare{t}")
                a.label(f"{name}_back{t}")
                a.ws += 1
                rare.append(t)
        return [f]

    def softmax_ops(t):
        sb = SA + 32 * (t & 1)
        groups = []
        for ks in range(4):
            ops = []
            rr = [sb + 8 * ks + k for k in range(8)]
            for x in rr:
                ops.append(lambda x=x: V(f"v_fma_f32 v{x}, v{x}, s{S_C}, -v{MC}", [f'v{x}', f's{S_C}', f'v{MC}'], [f'v{x}']))
            for x in rr:
                ops.append(lambda x=x: a.trans(f"v_exp_f32 v{x}, v{x}", [f'v{x}'], [f'v{x}']))
            for k, x in enumerate(rr):
                l = L0 if k % 2 == 0 else L1
                ops.append(lambda x=x, l=l: V(f"v_add_f32 v{l}, v{l}, v{x}", [f'v{l}', f'v{x}'], [f'v{l}']))
            for u in range(4):
                ops.append(lambda u=u, rr=rr: V(f"v_cvt_pk_bf16_f32 v{rr[u]}, v{rr[2*u]}, v{rr[2*u+1]}", [f'v{rr[2*u]}', f'v{rr[2*u+1]}'], [f'v{rr[u]}']))
            groups.append(ops)
        return groups

    def spread(ops, lo, hi_):
        n = hi_ - lo
        for k, op in enumerate(ops):
            addfill(lo + (k * n) // len(ops), op)

    s0idx = idx_of(lambda m: m['kind'] == 'S' and m['t'] == 0)
    spread(max_tree(SA, [0], 0), s0idx[8] + 3, s0idx[15] + 1)
    for t in range(8):
        pv = idx_of(lambda m: m['kind'] == 'PV' and m['t'] == t)
        if t < 7:
            sn = idx_of(lambda m: m['kind'] == 'S' and m['t'] == t + 1)
            start = sn[0]
        else:
            start = None
        g = softmax_ops(t)
        pre = []
        if t == 0:
            pre += max_tree(SA, [1], 0) + max_finish()
        pre += decision(t)
        if t < 7:
            sbn = SA + 32 * ((t + 1) & 1)
            allops = pre + g[0] + g[1] + g[2] + g[3]
            spread(allops, start, pv[11])
            mt = max_tree(sbn, [0], 0) + max_tree(sbn, [1], 0) + max_finish()
            spread(mt, pv[11], pv[15] + 1)
        else:
            M[pv[0]]['pre'] = pre + g[0]
            spread(g[1], pv[0], pv[3] + 1)
            spread(g[2], pv[4], pv[7] + 1)
            spread(g[3], pv[8], pv[11] + 1)

    synced = -1
    released_upto = -1
    phase_tiles = {}
    for m in M:
        phase_tiles.setdefault(m['phase'], m['tiles'])

    def sync(ph):
        nonlocal synced, released_upto
        if ph <= synced:
            return
        for tn in phase_tiles[ph]:
            assert tn in tiles, f"tile {tn} not issued before sync"
            a.wait_vm_tag(tn)
        a.barrier()
        synced = ph
        for p in range(released_upto + 1, ph - 1):
            for tn in phase_tiles[p]:
                free.append(tiles[tn])
            released_upto = p
        issue_pending()

    for i in range(min(D_AHEAD, len(M))):
        sync(M[i]['phase'])
        M[i]['reads'](pool(i))
    for i, m in enumerate(M):
        j = i + D_AHEAD
        if j < len(M):
            sync(M[j]['phase'])
            M[j]['reads'](pool(j))
        for fn in m.get('pre', []):
            fn()
        m['mfma'](pool(i))
        for fn in fill.get(i, []):
            fn()
    assert not pending

    V(f"v_add_f32 v{L0}, v{L0}, v{L1}", [f'v{L0}', f'v{L1}'], [f'v{L0}'])
    V(f"v_mov_b32 v{L1}, v{L0}", [f'v{L0}'], [f'v{L1}'])
    a.emit(f"v_permlane32_swap_b32 v{L0}, v{L1}", 'permlane', [f'v{L0}', f'v{L1}'], [f'v{L0}', f'v{L1}'])
    V(f"v_add_f32 v{L0}, v{L0}, v{L1}", [f'v{L0}', f'v{L1}'], [f'v{L0}'])
    a.trans(f"v_rcp_f32 v{L0}, v{L0}", [f'v{L0}'], [f'v{L0}'])
    for T in range(4):
        for p in range(2):
            b0 = O0 + 16 * T + 8 * p
            for k in range(8):
                V(f"v_mul_f32 v{b0+k}, v{b0+k}, v{L0}", [f'v{b0+k}', f'v{L0}'], [f'v{b0+k}'])
            d = POOL + 4 * ((2 * T + p) % 8)
            for u in range(4):
                V(f"v_cvt_pk_bf16_f32 v{d+u}, v{b0+2*u}, v{b0+2*u+1}", [f'v{b0+2*u}', f'v{b0+2*u+1}'], [f'v{d+u}'])
            a.emit(f"buffer_store_dwordx4 v[{d}:{d+3}], v{VOST}, s[{S_O}:{S_O+3}], 0 offen offset:{T*1024 + p*512}",
                   'vm_store', [f'v[{d}:{d+3}]', f'v{VOST}'], [], tag='st')
    a.label(f"{name}_done")
    a.raw("    s_endpgm")
    for t in rare:
        a.label(f"{name}_rare{t}")
        a.raw("    s_nop 15")
        a.raw("    s_nop 15")
        a.raw(f"    v_max_f32 v{T0}, v{MRUN}, v{TMAX}")
        a.raw(f"    v_sub_f32 v{T0+1}, v{MRUN}, v{T0}")
        a.raw(f"    v_mul_f32 v{T0+1}, s{S_C}, v{T0+1}")
        a.raw(f"    v_exp_f32 v{T0+1}, v{T0+1}")
        a.raw(f"    v_mov_b32 v{MRUN}, v{T0}")
        a.raw(f"    v_mul_f32 v{MC}, s{S_C}, v{T0}")
        a.raw(f"    v_add_f32 v{THRV}, 0x{f32bits(THR):08x}, v{T0}")
        a.raw(f"    v_mul_f32 v{L0}, v{L0}, v{T0+1}")
        a.raw(f"    v_mul_f32 v{L1}, v{L1}, v{T0+1}")
        for k in range(64):
            a.raw(f"    v_mul_f32 v{O0+k}, v{O0+k}, v{T0+1}")
        a.raw("    s_nop 3")
        a.raw(f"    s_branch {name}_back{t}")
```

```python
from asmlib import Asm, vr

NW = 4
NSLOT = 10
DEPTH = 9
ACC = 0
BF = 32
POOL = 128
VWD = 160
VB = 161
VR0 = 162
VOUT = 164
VRED = 165
T0 = 170
S_W, S_O, S_OUT = 20, 24, 28

def gen_k2(a: Asm, name):
    a.label(name)
    S = a.salu
    V = a.valu
    a.raw("    s_cmp_ge_u32 s2, 256")
    a.raw(f"    s_cbranch_scc1 {name}_done")
    S("s_and_b32 s40, s2, 7", [], ['s40'])
    S("s_lshr_b32 s41, s2, 3", [], ['s41'])
    S("s_lshl_b32 s40, s40, 5", ['s40'], ['s40'])
    S("s_add_u32 s40, s40, s41", ['s40', 's41'], ['s40'])
    a.raw("    s_cmp_ge_u32 s40, 252")
    a.raw(f"    s_cbranch_scc1 {name}_done")
    a.raw("    s_load_dwordx4 s[12:15], s[0:1], 32")
    a.raw("    s_load_dwordx4 s[16:19], s[0:1], 48")
    S("s_mul_i32 s42, s40, 7282", ['s40'], ['s42'])
    S("s_lshr_b32 s42, s42, 16", ['s42'], ['s42'])
    S("s_mul_i32 s43, s42, 9", ['s42'], ['s43'])
    S("s_sub_u32 s43, s40, s43", ['s40', 's43'], ['s43'])
    t = T0
    V(f"v_lshrrev_b32 v{t}, 6, v0", ['v0'], [f'v{t}'])
    V(f"v_and_b32 v{t+1}, 63, v0", ['v0'], [f'v{t+1}'])
    a.emit(f"v_readfirstlane_b32 s46, v{t}", 'readlane', [f'v{t}'], ['s46'])
    L = f"v{t+1}"
    q, hi, sub, r, c, x0, x1, x2 = [f"v{t+2+i}" for i in range(8)]
    V(f"v_and_b32 {q}, 31, {L}", [L], [q])
    V(f"v_lshrrev_b32 {hi}, 5, {L}", [L], [hi])
    V(f"v_bfe_u32 {sub}, {L}, 4, 1", [L], [sub])
    V(f"v_bfe_u32 {r}, {L}, 2, 2", [L], [r])
    V(f"v_and_b32 {c}, 3, {L}", [L], [c])
    V(f"v_lshrrev_b32 {x0}, 3, {L}", [L], [x0])
    S("s_movk_i32 s55, 1152", [], ['s55'])
    V(f"v_mul_lo_u32 {x0}, {x0}, s55", [x0, 's55'], [x0])
    V(f"v_and_b32 {x1}, 7, {L}", [L], [x1])
    V(f"v_lshlrev_b32 {x2}, 2, {sub}", [sub], [x2])
    V(f"v_xor_b32 {x1}, {x1}, {x2}", [x1, x2], [x1])
    V(f"v_lshl_add_u32 v{VWD}, {x1}, 4, {x0}", [x1, x0], [f'v{VWD}'])
    S("s_mul_i32 s47, s46, 1179648", ['s46'], ['s47'])
    S("s_lshl_b32 s52, s43, 7", ['s43'], ['s52'])
    S("s_add_u32 s47, s47, s52", ['s47', 's52'], ['s47'])
    S(f"s_mul_i32 s49, s46, {NSLOT*4096}", ['s46'], ['s49'])
    S("s_lshl_b32 s52, s42, 1", ['s42'], ['s52'])
    V(f"v_lshrrev_b32 {x0}, 4, {q}", [q], [x0])
    V(f"v_add_u32 {x0}, s52, {x0}", ['s52', x0], [x0])
    V(f"v_lshlrev_b32 {x0}, 9, {x0}", [x0], [x0])
    V(f"v_add_u32 {x0}, {x0}, {hi}", [x0, hi], [x0])
    V(f"v_lshlrev_b32 {x0}, 8, {x0}", [x0], [x0])
    V(f"v_and_b32 {x1}, 15, {q}", [q], [x1])
    V(f"v_lshl_add_u32 v{VB}, {x1}, 4, {x0}", [x1, x0], [f'v{VB}'])
    S("s_lshl_b32 s48, s46, 15", ['s46'], ['s48'])
    V(f"v_lshl_add_u32 {x0}, {hi}, 2, {r}", [hi, r], [x0])
    V(f"v_lshlrev_b32 {x0}, 7, {x0}", [x0], [x0])
    V(f"v_lshl_add_u32 {x0}, {sub}, 5, {x0}", [sub, x0], [x0])
    V(f"v_lshl_add_u32 {x0}, {c}, 3, {x0}", [c, x0], [x0])
    V(f"v_add_u32 {x0}, s49, {x0}", ['s49', x0], [x0])
    V(f"v_lshrrev_b32 {x1}, 1, {r}", [r], [x1])
    for T in range(2):
        V(f"v_xor_b32 {x2}, {T}, {x1}", [x1], [x2])
        V(f"v_lshl_add_u32 v{VR0+T}, {x2}, 6, {x0}", [x2, x0], [f'v{VR0+T}'])
    S("s_lshl_b32 s52, s42, 5", ['s42'], ['s52'])
    V(f"v_add_u32 {x0}, s52, {q}", ['s52', q], [x0])
    V(f"v_mul_lo_u32 {x0}, {x0}, s55", [x0, 's55'], [x0])
    V(f"v_lshl_add_u32 {x0}, {hi}, 3, {x0}", [hi, x0], [x0])
    S("s_lshl_b32 s52, s43, 7", ['s43'], ['s52'])
    S("s_lshl_b32 s53, s46, 5", ['s46'], ['s53'])
    S("s_add_u32 s52, s52, s53", ['s52', 's53'], ['s52'])
    V(f"v_add_u32 v{VOUT}, s52, {x0}", ['s52', x0], [f'v{VOUT}'])
    V(f"v_lshlrev_b32 v{VRED}, 4, {L}", [L], [f'v{VRED}'])
    a.raw("    s_waitcnt lgkmcnt(0)")
    a.ws += 1
    def srd(base, ptr, size):
        S(f"s_mov_b32 s{base}, s{ptr}", [], [f's{base}'])
        S(f"s_and_b32 s{base+1}, s{ptr+1}, 0xffff", [], [f's{base+1}'])
        S(f"s_mov_b32 s{base+2}, {size}", [], [f's{base+2}'])
        S(f"s_mov_b32 s{base+3}, 0x00020000", [], [f's{base+3}'])
    srd(S_W, 12, 4096 * 1152)
    srd(S_O, 18, 56 * 128 * 1024)
    srd(S_OUT, 14, 896 * 1152)

    NCH = 32
    def issue(ch):
        slot = ch % NSLOT
        bf = BF + 8 * (ch % (DEPTH + 1))
        S(f"s_add_u32 s51, s48, 0x{ch*1024:x}", ['s48'], ['s51'])
        for p in range(2):
            off = f" offset:512" if p else ""
            a.emit(f"buffer_load_dwordx4 v[{bf+4*p}:{bf+4*p+3}], v{VB}, s[{S_O}:{S_O+3}], s51 offen{off}",
                   'vm_load', [f'v{VB}', 's51'], [f'v[{bf+4*p}:{bf+4*p+3}]'], tag=f'B{ch}')
        for j in range(4):
            S(f"s_add_u32 s50, s47, 0x{(ch*32 + 8*j)*1152:x}", ['s47'], ['s50'])
            S(f"s_add_u32 m0, s49, 0x{slot*4096 + j*1024:x}", ['s49'], ['m0'])
            a.emit(f"buffer_load_dwordx4 v{VWD}, s[{S_W}:{S_W+3}], s50 offen lds", 'vm_lds', [f'v{VWD}', 'm0', 's50'], [], tag=f'W{ch}')

    M = []
    for ch in range(NCH):
        for p in range(2):
            for T in range(2):
                M.append((ch, p, T))
    def pool(i):
        return POOL + 4 * (i % 8)
    DA = 4
    def reads(i):
        ch, p, T = M[i]
        if p == 0 and T == 0:
            a.wait_vm_tag(f'W{ch}')
        slot = ch % NSLOT
        pr = pool(i)
        for half in range(2):
            off = slot * 4096 + (16 * p + 8 * half) * 128
            a.emit(f"ds_read_b64_tr_b16 v[{pr+2*half}:{pr+2*half+1}], v{VR0+T} offset:{off}", 'ds_read', [f'v{VR0+T}'], [f'v[{pr+2*half}:{pr+2*half+1}]'])
    for ch in range(DEPTH):
        issue(ch)
    for i in range(DA):
        reads(i)
    for i, (ch, p, T) in enumerate(M):
        if i + DA < len(M):
            reads(i + DA)
        bf = BF + 8 * (ch % (DEPTH + 1)) + 4 * p
        a.mfma32(vr(ACC + 16 * T, 16), vr(pool(i), 4), vr(bf, 4), 0 if (ch == 0 and p == 0) else None)
        if p == 1 and T == 1 and ch + DEPTH < NCH:
            issue(ch + DEPTH)
    a.barrier()
    S("s_lshl_b32 s52, s46, 13", ['s46'], ['s52'])
    V(f"v_add_u32 v{T0}, s52, v{VRED}", ['s52', f'v{VRED}'], [f'v{T0}'])
    for i in range(8):
        a.emit(f"ds_write_b128 v{T0}, v[{ACC+4*i}:{ACC+4*i+3}] offset:{i*1024}", 'ds_write', [f'v{T0}', f'v[{ACC+4*i}:{ACC+4*i+3}]'], [])
    a.wait_lgkm(0)
    a.barrier()
    S("s_lshl_b32 s52, s46, 11", ['s46'], ['s52'])
    V(f"v_add_u32 v{T0}, s52, v{VRED}", ['s52', f'v{VRED}'], [f'v{T0}'])
    for ww in range(4):
        for h in range(2):
            d = BF + 8 * ww + 4 * h
            a.emit(f"ds_read_b128 v[{d}:{d+3}], v{T0} offset:{ww*8192 + h*1024}", 'ds_read', [f'v{T0}'], [f'v[{d}:{d+3}]'])
    for k in range(8):
        V(f"v_add_f32 v{BF+k}, v{BF+k}, v{BF+8+k}", [f'v{BF+k}', f'v{BF+8+k}'], [f'v{BF+k}'])
        V(f"v_add_f32 v{BF+16+k}, v{BF+16+k}, v{BF+24+k}", [f'v{BF+16+k}', f'v{BF+24+k}'], [f'v{BF+16+k}'])
    for k in range(8):
        V(f"v_add_f32 v{BF+k}, v{BF+k}, v{BF+16+k}", [f'v{BF+k}', f'v{BF+16+k}'], [f'v{BF+k}'])
    for u in range(4):
        V(f"v_cvt_pk_bf16_f32 v{POOL+u}, v{BF+2*u}, v{BF+2*u+1}", [f'v{BF+2*u}', f'v{BF+2*u+1}'], [f'v{POOL+u}'])
    for h in range(2):
        off = " offset:16" if h else ""
        a.emit(f"buffer_store_dwordx2 v[{POOL+2*h}:{POOL+2*h+1}], v{VOUT}, s[{S_OUT}:{S_OUT+3}], 0 offen{off}", 'vm_store', [f'v[{POOL+2*h}:{POOL+2*h+1}]', f'v{VOUT}'], [], tag='st')
    a.label(f"{name}_done")
    a.raw("    s_endpgm")
    return 256, 64 * NW, NW * NSLOT * 4096, 184, 184
```

```python
import sys
sys.path.insert(0, 'gen')
from asmlib import Asm
import k1

HEADER = """; Kernarg layout (64 bytes, ptrs only, base s[0:1]):
"""

def kd(name, vgpr, accum, sgpr=102):
    return f""".amdhsa_kernel {name}
  .amdhsa_next_free_vgpr {vgpr}
  .amdhsa_next_free_sgpr {sgpr}
  .amdhsa_accum_offset {accum}
  .amdhsa_group_segment_fixed_size 0
  .amdhsa_kernarg_size 64
  .amdhsa_user_sgpr_count 2
  .amdhsa_user_sgpr_kernarg_segment_ptr 1
  .amdhsa_system_sgpr_workgroup_id_x 1
  .amdhsa_float_denorm_mode_32 3
.end_amdhsa_kernel
"""

def main(out):
    launches = []
    body = []
    kds = []
    a = Asm()
    n1 = "gqa_attn_kernel"
    a.raw(f".globl {n1}\n.p2align 8\n.type {n1},@function")
    k1.gen_k1(a, n1)
    body.append(a.text())
    print("k1 stats", a.n_by_kind, "nops", a.nops, file=sys.stderr)
    launches.append(f"; @launch kernel={n1} grid=(256,1,1) block=(256,1,1) lds=163840")
    kds.append(kd(n1, 400, 256))
    try:
        import k2
        a = Asm()
        n2 = "gqa_oproj_kernel"
        a.raw(f".globl {n2}\n.p2align 8\n.type {n2},@function")
        g, blk, lds, vg, ac = k2.gen_k2(a, n2)
        body.append(a.text())
        print("k2 stats", a.n_by_kind, "nops", a.nops, file=sys.stderr)
        launches.append(f"; @launch kernel={n2} grid=({g},1,1) block=({blk},1,1) lds={lds}")
        kds.append(kd(n2, vg, ac))
    except ImportError:
        pass
    txt = HEADER + "\n".join(launches) + "\n.amdgcn_target \"amdgcn-amd-amdhsa--gfx950\"\n.text\n" + "\n".join(body)
    txt += "\n.section .rodata,\"a\"\n.p2align 6\n" + "\n.p2align 6\n".join(kds)
    open(out, 'w').write(txt)

if __name__ == '__main__':
    main(sys.argv[1] if len(sys.argv) > 1 else 'standalone__gqa_block_cached__near_ridge.s')
```
